```python
import torch

def _softmax(x, axis=-1):
    return torch.softmax(x, dim=axis)
def _gelu(x):
    return torch.nn.functional.gelu(x, approximate="tanh")
def _silu(x):
    return torch.nn.functional.silu(x)
def _sigmoid(x):
    return torch.sigmoid(x)
def _layernorm(x, axis=-1, eps=1e-5):
    m = x.mean(dim=axis, keepdim=True)
    v = x.var(dim=axis, keepdim=True, unbiased=False)
    return (x - m) / torch.sqrt(v + eps)
def _scatter_add(tgt, idx, src, axis=0):
    return tgt.clone().index_add_(axis, idx, src)
def _segment_sum(src, seg, n):
    out = torch.zeros((n,) + src.shape[1:], dtype=src.dtype)
    return out.index_add_(0, seg, src)
def _pad(x, pw):
    flat = tuple(v for pair in reversed(pw) for v in pair)
    return torch.nn.functional.pad(x, flat)

kernel_name = 'concat_heads__gqa_block_cached__mha_block_cached__near_ridge'

def setup_inputs():

    _w = (lambda a: (lambda t: t.to(torch.bfloat16) if t.is_floating_point() else t)(torch.as_tensor(a)))
    def _A_setup():
        B, Sq, D = 8, 128, 448
        Hq, Hkv, Sk, Dh = 16, 8, 1024, 256
        assert Hq % Hkv == 0, (Hq, Hkv)
        return {
            "x": _w((lambda *s: torch.randn(*s, dtype=torch.bfloat16) * 0.8)(B, Sq, D)),
            "k_cache": _w((lambda *s: torch.randn(*s, dtype=torch.bfloat16) * 0.8)(B, Hkv, Sk, Dh)),
            "v_cache": _w((lambda *s: torch.randn(*s, dtype=torch.bfloat16) * 0.05)(B, Hkv, Sk, Dh)),
            "wq": _w((lambda *s: torch.randn(*s, dtype=torch.bfloat16) * 0.8)(D, Hq * Dh) * (D ** -0.5)),
            "wo": _w((lambda *s: torch.randn(*s, dtype=torch.bfloat16) * 0.05)(Hq * Dh, D) * ((Hq * Dh) ** -0.5)),
        }
    _A_in = _A_setup()

    def _B_setup():
        B, Sq, D = 8, 128, 448
        H, Sk, Dh = 16, 1024, 256
        return {
            "x": _w((lambda *s: torch.randn(*s, dtype=torch.bfloat16) * 0.8)(B, Sq, D)),
            "k_cache": _w((lambda *s: torch.randn(*s, dtype=torch.bfloat16) * 0.8)(B, H, Sk, Dh)),
            "v_cache": _w((lambda *s: torch.randn(*s, dtype=torch.bfloat16) * 0.05)(B, H, Sk, Dh)),
            "wq": _w((lambda *s: torch.randn(*s, dtype=torch.bfloat16) * 0.8)(D, H * Dh) * (D ** -0.5)),
            "wo": _w((lambda *s: torch.randn(*s, dtype=torch.bfloat16) * 0.05)(H * Dh, D) * ((H * Dh) ** -0.5)),
        }
    _B_in = _B_setup()

    return {
        "A_x": _A_in["x"],
        "A_k_cache": _A_in["k_cache"],
        "A_v_cache": _A_in["v_cache"],
        "A_wq": _A_in["wq"],
        "A_wo": _A_in["wo"],
        "B_x": _B_in["x"],
        "B_k_cache": _B_in["k_cache"],
        "B_v_cache": _B_in["v_cache"],
        "B_wq": _B_in["wq"],
        "B_wo": _B_in["wo"],
    }

def reference(A_x, A_k_cache, A_v_cache, A_wq, A_wo, B_x, B_k_cache, B_v_cache, B_wq, B_wo):
    def _A_ref(x, k_cache, v_cache, wq, wo):
        B, Sq, D = x.shape
        Hq, Dh = 16, 256
        Hkv = k_cache.shape[1]
        rep = Hq // Hkv
        q = (lambda x, *d: x.permute(*d))((x @ wq).reshape(B, Sq, Hq, Dh), 0, 2, 1, 3)
        k = (lambda x, n, axis: torch.repeat_interleave(x, n, dim=axis))(k_cache, rep, axis=1)
        v = (lambda x, n, axis: torch.repeat_interleave(x, n, dim=axis))(v_cache, rep, axis=1)
        scores = torch.einsum("bhqd,bhkd->bhqk", q, k) * (Dh ** -0.5)
        p = _softmax(scores, axis=-1)
        o = torch.einsum("bhqk,bhkd->bhqd", p, v)
        return (lambda x, *d: x.permute(*d))(o, 0, 2, 1, 3).reshape(B, Sq, Hq * Dh) @ wo

    def _B_ref(x, k_cache, v_cache, wq, wo):
        B, Sq, D = x.shape
        H, Dh = 16, 256
        q = (lambda x, *d: x.permute(*d))((x @ wq).reshape(B, Sq, H, Dh), 0, 2, 1, 3)
        scores = torch.einsum("bhqd,bhkd->bhqk", q, k_cache) * (Dh ** -0.5)
        p = _softmax(scores, axis=-1)
        o = torch.einsum("bhqk,bhkd->bhqd", p, v_cache)
        return (lambda x, *d: x.permute(*d))(o, 0, 2, 1, 3).reshape(B, Sq, H * Dh) @ wo

    a = _A_ref(A_x, A_k_cache, A_v_cache, A_wq, A_wo)
    b = _B_ref(B_x, B_k_cache, B_v_cache, B_wq, B_wo)
    return torch.concatenate([a, b], axis=-1)
```

```python
import re
TRANS = ("v_exp_f32", "v_log_f32", "v_rcp_f32", "v_rsq_f32", "v_sqrt_f32", "v_sin_f32", "v_cos_f32")
def regs(op):
    op = op.strip()
    op = op.lstrip("-")
    m = re.fullmatch(r"([vas])\[(\d+):(\d+)\]", op)
    if m: return {f"{m.group(1)}{i}" for i in range(int(m.group(2)), int(m.group(3)) + 1)}
    m = re.fullmatch(r"([vas])(\d+)", op)
    if m: return {op}
    if op in ("vcc", "m0", "exec"): return {op}
    return set()
class I:
    def __init__(s, text):
        s.text = text
        t = text.split(";")[0].strip()
        s.op = t.split()[0]
        rest = t[len(s.op):].strip()
        ops = [o.strip() for o in rest.split(",")] if rest else []
        if ops:
            last = ops[-1].split()
            s.mods = last[1:]
            ops[-1] = last[0] if last else ""
        else: s.mods = []
        s.ops = ops
        op = re.sub(r"_e(32|64)$", "", s.op)
        s.base = op
        s.mfma = op.startswith("v_mfma")
        s.valu = op.startswith("v_") and not s.mfma
        s.trans = op in TRANS
        s.ds = op.startswith("ds_")
        s.vmem = op.startswith("buffer_") or op.startswith("global_")
        s.lds_dma = s.vmem and "lds" in s.mods
        s.store = s.vmem and ("store" in op or "atomic" in op)
        s.salu = op.startswith("s_")
        s.w = set(); s.r = set(); s.srcC = set(); s.srcAB = set(); s.data = set()
        R = [regs(o) for o in ops]
        if s.mfma:
            s.w = R[0]; s.srcAB = R[1] | R[2]; s.srcC = R[3]; s.r = s.srcAB | s.srcC
        elif op.startswith("v_permlane32_swap") or op.startswith("v_permlane16_swap"):
            s.w = R[0] | R[1]; s.r = R[0] | R[1]
        elif op.startswith("v_cmp"):
            s.w = R[0]; s.r = set().union(*R[1:])
        elif op in ("v_fmac_f32", "v_writelane_b32"):
            s.w = R[0]; s.r = set().union(*R)
        elif op == "v_nop": pass
        elif s.valu:
            s.w = R[0]; s.r = set().union(*R[1:]) if len(R) > 1 else set()
        elif s.ds:
            if "read" in op: s.w = R[0]; s.r = R[1]
            else: s.r = set().union(*R)
        elif op in ("buffer_wbl2", "buffer_inv"): pass
        elif s.vmem:
            if s.lds_dma: s.r = set().union(*R) | {"m0"}
            elif s.store:
                s.r = set().union(*R)
                s.data = R[0] if op.startswith("buffer") else R[1]
                if "atomic" in op and "sc0" in s.mods: s.w = R[0]
            else: s.w = R[0]; s.r = set().union(*R[1:])
        elif s.salu:
            if op.startswith("s_cmp") or op.startswith("s_cbranch") or op in ("s_waitcnt", "s_barrier", "s_nop", "s_branch", "s_endpgm", "s_sleep", "s_setprio", "s_setpc_b64", "s_bitcmp1_b32", "s_bitcmp0_b32"):
                s.r = set().union(*R) if R else set()
            else:
                s.w = R[0] if R else set(); s.r = set().union(*R[1:]) if len(R) > 1 else set()
        s.states = 1
        if op == "s_nop": s.states = int(ops[0], 0) + 1
def check(lines, name=""):
    ins = [I(l) for l in lines if l.strip() and not l.strip().endswith(":") and not l.strip().startswith((";", "."))]
    errs = []
    pend_ds = []
    pend_vm = []
    for n, c in enumerate(ins):
        dist = 0
        for p in reversed(ins[max(0, n - 24):n]):
            need = 0
            if p.mfma:
                if c.mfma:
                    if p.w & c.srcAB: need = 12
                    if p.w & c.srcC and p.w != c.srcC: need = max(need, 10)
                    if p.w & c.w and p.w != c.srcC: need = max(need, 10)
                elif c.valu and (p.w & (c.r | c.w)): need = 12
                elif (c.ds or c.vmem) and (p.w & (c.r | c.w)): need = 12
                if c.valu and (p.srcC & c.w): need = max(need, 7)
            elif p.valu:
                vw = {r for r in p.w if r[0] in "va" and r != "vcc"}
                sw = p.w - vw
                if c.mfma and vw & c.r: need = 2
                if p.trans and c.valu and not c.trans and vw & c.r: need = max(need, 1)
                if c.base.startswith("v_permlane") and vw & c.r: need = max(need, 2)
                if c.base in ("v_readfirstlane_b32", "v_readlane_b32") and vw & c.r: need = max(need, 1)
                if c.valu and sw & c.r: need = max(need, 2)
                if c.base in ("v_readlane_b32", "v_writelane_b32") and sw & c.r: need = max(need, 4)
                if c.vmem and sw & c.r: need = max(need, 5)
            elif p.salu:
                if "m0" in p.w and c.lds_dma: need = 1
            elif p.store and len(p.data) >= 3:
                if (p.data & c.w): need = 2
            if need > dist:
                errs.append(f"{name}: hazard need {need} have {dist}: [{p.text.strip()}] -> [{c.text.strip()}]")
            dist += p.states
        if c.base == "s_waitcnt":
            t = c.text
            m = re.search(r"lgkmcnt\((\d+)\)", t)
            if m:
                k = int(m.group(1)); pend_ds = pend_ds[len(pend_ds) - k:] if k and len(pend_ds) > k else ([] if k == 0 else pend_ds)
            m = re.search(r"vmcnt\((\d+)\)", t)
            if m:
                k = int(m.group(1)); pend_vm = pend_vm[len(pend_vm) - k:] if k and len(pend_vm) > k else ([] if k == 0 else pend_vm)
        else:
            for q in pend_ds + pend_vm:
                if q & (c.r | c.w):
                    errs.append(f"{name}: un-waited load reg used by [{c.text.strip()}]")
                    break
        if c.ds: pend_ds.append(set(c.w))
        if c.base.startswith("s_load") or c.base in ("s_memtime", "s_memrealtime"): pend_ds.append(set(c.w))
        if c.vmem and c.base not in ("buffer_wbl2", "buffer_inv"): pend_vm.append(set(c.w))
    return errs
```

```python
import sys, struct, math
import hazard
NAME = "concat_heads__gqa_block_cached__mha_block_cached__near_ridge"

def f2u(x): return struct.unpack("<I", struct.pack("<f", x))[0]

SRD_K, SRD_V, SRD_W, SRD_X, SRD_O, SRD_P = 8, 12, 16, 20, 24, 28
S_WB, S_WAVE, S_KOFF, S_VOFF, S_WOFF, S_XOFF, S_OOFF, S_CNT = 32, 33, 34, 35, 36, 37, 38, 39
S_THR, S_SCALE, S_RET, S_STAMP, S_POFF, S_TMP = 40, 41, 42, 44, 46, 47
V_DK, V_DV, V_DW, V_DX, V_DO = 8, 12, 14, 18, 22
V_RK, V_RV, V_RW, V_RX, V_RO = 26, 34, 38, 42, 46
V_L, V_MAX, V_T0, V_T1, V_RINV, V_ST, V_STAMP = 48, 49, 50, 51, 52, 53, 54
V_QT = 56
V_S = (64, 80); V_P = 96; V_NEGM = 112; V_ACC = 128
V_OUT = 64
A_Q = 0; A_F = (64, 128); A_X = 192
SLOT = 16384
def srd(b): return f"s[{b}:{b+3}]"
def vr(b, n): return f"v[{b}:{b+n-1}]"
def ar(b, n): return f"a[{b}:{b+n-1}]"

class Cfg:
    D = 4
    nt_kv = "nt"; nt_w = "nt"; nt_x = "nt"; nt_o = "nt"; st_flag = ""; ld_flag = ""
    stamps = False
    rot = True
    thr = 8.0
    samekv = False
    def __init__(self, **kw):
        for k, v in kw.items():
            assert hasattr(self, k), k
            setattr(self, k, v)

class Gen:
    def __init__(self, cfg):
        self.c = cfg
        self.L = []
        self.tail = []
        self.vm = []
        self.nstamp = 0
        self.nsite = 0
    def e(self, s):
        for l in s.strip("\n").split("\n"):
            l = l.strip()
            if not l: continue
            self.L.append(l if l.endswith(":") else "    " + l)
    def emit(self, item):
        if isinstance(item, tuple):
            self.e(item[0]); self.vm.append(item[1])
        else: self.e(item)
    def vm_need(self, tags):
        last = -1
        for i, t in enumerate(self.vm):
            if t in tags: last = i
        n = len(self.vm) - 1 - last
        if last >= 0: self.vm = self.vm[last + 1:]
        return n if last >= 0 else None
    def stamp(self):
        if not self.c.stamps: return
        self.e(f"""s_memrealtime s[{S_STAMP}:{S_STAMP+1}]
        s_waitcnt lgkmcnt(0)
        v_writelane_b32 v{V_STAMP}, s{S_STAMP}, {self.nstamp}""")
        self.nstamp += 1

    @staticmethod
    def tile(n):
        if n < 14: return ("W", n)
        p = n - 14
        if p == 0: return ("K", 0)
        if p == 63: return ("V", 31)
        if p < 63: return ("K", (p + 1) // 2) if p & 1 else ("V", p // 2 - 1)
        if n < 92: return ("O", n - 78)
        return None
    def slot(self, n): return (n % self.c.D) * SLOT
    def dma(self, n):
        t = self.tile(n)
        if t is None: return []
        kind, idx = t
        c = self.c
        r = [f"s_add_u32 m0, s{S_WB}, {self.slot(n)}"]
        spec = {"K": (SRD_K, S_KOFF, [V_DK + i for i in range(4)], c.nt_kv),
                "V": (SRD_V, S_VOFF, [V_DV + (i & 1) for i in range(4)], c.nt_kv),
                "W": (SRD_W, S_WOFF, [V_DW + i for i in range(4)], c.nt_w),
                "O": (SRD_O, S_OOFF, [V_DO + i for i in range(4)], c.nt_o)}[kind]
        if kind == "O":
            r.append(f"s_mov_b32 s{S_OOFF}, {(idx & 1) * 128 * 896 + (idx >> 1) * 128}")
        else: r.append("s_nop 0")
        for i in range(4):
            r.append((f"buffer_load_dwordx4 v{spec[2][i]}, {srd(spec[0])}, s{spec[1]} offen offset:{i*1024} {spec[3]} lds", n))
        if kind in "KV": r.append(f"s_add_u32 s{spec[1]}, s{spec[1]}, {SLOT}")
        if kind == "W":
            r.append(f"s_add_u32 s{S_WOFF}, s{S_WOFF}, {32*8192}")
            if idx & 1:
                r.append(f"s_cmp_ge_u32 s{S_WOFF}, {448*8192}")
                r.append(f"s_cselect_b32 s{S_WOFF}, 0, s{S_WOFF}")
        return r
    XBASE = 65536
    def dma_x(self, j):
        if j >= 7: return []
        r = [f"s_add_u32 m0, s{S_WB}, {self.XBASE + (j & 1) * SLOT}", "s_nop 0"]
        for i in range(4):
            r.append((f"buffer_load_dwordx4 v{V_DX+i}, {srd(SRD_X)}, s{S_XOFF} offen offset:{i*1024} {self.c.nt_x} lds", ("X", j)))
        r += [f"s_add_u32 s{S_XOFF}, s{S_XOFF}, 128", f"s_cmp_ge_u32 s{S_XOFF}, 896", f"s_cselect_b32 s{S_XOFF}, 0, s{S_XOFF}"]
        return r
    def reads(self, n):
        t = self.tile(n)
        if t is None: return []
        kind, idx = t
        F = A_F[n & 1]; sl = self.slot(n); r = []
        if kind == "K":
            for s in range(16):
                r.append(f"ds_read_b128 {ar(F+4*s,4)}, v{V_RK+(s&7)} offset:{sl+(s>>3)*256}")
        elif kind in "VW":
            for ks in range(2):
                for dt in range(8):
                    for u in range(2):
                        row = 16 * ks + (8 * u if kind == "V" else 4 * u)
                        base = (V_RV if kind == "V" else V_RW) + (dt & 3)
                        r.append(f"ds_read_b64_tr_b16 {ar(F+4*(ks*8+dt)+2*u,2)}, v{base} offset:{sl+row*512+(dt>>2)*256}")
        else:
            for ks in range(8):
                for nt in range(2):
                    for u in range(2):
                        r.append(f"ds_read_b64_tr_b16 {ar(F+4*(ks*2+nt)+2*u,2)}, v{V_RO+nt} offset:{sl+(16*ks+8*u)*128}")
        return r
    def reads_x(self, j):
        if j >= 7: return []
        return [f"ds_read_b128 {ar(A_X+16*(j&1)+4*s,4)}, v{V_RX+s} offset:{(j&1)*SLOT}" for s in range(4)]

    def head(self, need):
        n = self.vm_need(need)
        self.e(f"s_waitcnt vmcnt({n}) lgkmcnt(0)" if n is not None else "s_waitcnt lgkmcnt(0)")
        self.e("s_barrier")

    @staticmethod
    def spread(gaps, items, g0, g1):
        n = len(items); m = g1 - g0 + 1
        for i, it in enumerate(items):
            gaps[g0 + (i * m) // max(n, 1)].append(it)
    def run_phase(self, mf, gaps):
        for g in range(16):
            self.e(mf[g])
            for it in gaps[g]: self.emit(it)
    def place_dma(self, gaps, d, g0=0):
        if not d: return
        loads = [x for x in d if isinstance(x, tuple)]
        first = d.index(loads[0]); last = d.index(loads[-1])
        gaps[g0] += d[:first]
        step = 2
        for i, ld in enumerate(loads): gaps[g0 + i * step].append(ld)
        gaps[g0 + (len(loads) - 1) * step] += d[last + 1:]

    MF = "v_mfma_f32_32x32x16_bf16"
    def q_phase(self, n):
        need = [n + 1]
        if n & 1: need.append(("X", (n + 1) // 2))
        self.head(need)
        F = A_F[n & 1]; j = n >> 1
        mf = []
        for ks in range(2):
            for dt in range(8):
                acc = vr(V_ACC + 16 * dt, 16)
                cc = "0" if (n == 0 and ks == 0) else acc
                mf.append(f"{self.MF} {acc}, {ar(F+4*(ks*8+dt),4)}, {ar(A_X+16*(j&1)+4*(2*(n&1)+ks),4)}, {cc}")
        gaps = [[] for _ in range(16)]
        rd = self.reads(n + 1)
        if n & 1: rd = self.reads_x((n + 1) // 2) + rd
        self.spread(gaps, rd, 0, 12)
        if not (n & 1):
            self.place_dma(gaps, self.dma_x(n // 2 + 2), 0)
            self.place_dma(gaps, self.dma(n + self.c.D), 8)
        else:
            self.place_dma(gaps, self.dma(n + self.c.D), 0)
        self.run_phase(mf, gaps)
    def q_fin(self, s):
        b = V_ACC + 8 * s; r = []
        for i in range(8): r.append(f"v_mul_f32 v{b+i}, s{S_SCALE}, v{b+i}")
        for i in range(4): r.append(f"v_cvt_pk_bf16_f32 v{V_QT+4*(s&1)+i}, v{b+2*i}, v{b+2*i+1}")
        for i in range(4): r.append(f"v_accvgpr_write_b32 a{A_Q+4*s+i}, v{V_QT+4*(s&1)+i}")
        return r
    def softmax_exp(self, t):
        S = V_S[t & 1]
        ex = [f"v_exp_f32 v{S+i}, v{S+i}" for i in range(16)]
        cv = [f"v_cvt_pk_bf16_f32 v{V_P+i}, v{S+2*i}, v{S+2*i+1}" for i in range(8)]
        return ex, cv
    def max_chain(self, t):
        S = V_S[t & 1]
        r = [f"v_max3_f32 v{V_MAX}, v{S}, v{S+1}, v{S+2}"]
        for i in range(3, 15, 2): r.append(f"v_max3_f32 v{V_MAX}, v{V_MAX}, v{S+i}, v{S+i+1}")
        r.append(f"v_max_f32 v{V_MAX}, v{V_MAX}, v{S+15}")
        return r
    def qk_phase(self, n, tk):
        self.head([n + 1])
        F = A_F[n & 1]; S = vr(V_S[tk & 1], 16)
        mf = []
        for s in range(16):
            cc = S if s else ("0" if tk == 0 else vr(V_NEGM, 16))
            mf.append(f"{self.MF} {S}, {ar(F+4*s,4)}, {ar(A_Q+4*s,4)}, {cc}")
        gaps = [[] for _ in range(16)]
        if tk == 0:
            for it in self.q_fin(0) + ["s_nop 1"]: self.e(it)
            for s in range(1, 16): gaps[s - 1] += self.q_fin(s)
            self.spread(gaps, self.reads(n + 1), 0, 12)
            for s in range(13, 15): gaps[s].append("s_nop 1")
            for s in range(0, 13): gaps[s].append("s_nop 0")
        else:
            ex, cv = self.softmax_exp(tk - 1)
            for i in range(16): gaps[i * 14 // 16].append(ex[i])
            self.spread(gaps, self.reads(n + 1), 0, 12)
            for i in range(8): gaps[min(15, (2 * i + 1) * 14 // 16 + 1)].append(cv[i])
        self.place_dma(gaps, self.dma(n + self.c.D), 8)
        self.run_phase(mf, gaps)
    def first_max(self):
        S = V_S[0]
        self.e("s_nop 11")
        for it in self.max_chain(0): self.e(it)
        self.e(f"""v_mov_b32 v{V_T0}, v{V_MAX}
        s_nop 1
        v_permlane32_swap_b32 v{V_T0}, v{V_MAX}
        s_nop 1
        v_max_f32 v{V_MAX}, v{V_T0}, v{V_MAX}
        v_mov_b32 v{V_L}, 0""")
        for i in range(16): self.e(f"v_sub_f32 v{V_NEGM+i}, 0, v{V_MAX}")
        for i in range(16): self.e(f"v_sub_f32 v{S+i}, v{S+i}, v{V_MAX}")
    def rescale_routines(self):
        for sb in range(2):
            S = V_S[sb]
            T = [f"L_rescale{sb}:", "s_nop 15", f"v_mov_b32 v{V_T0}, v{V_MAX}", "s_nop 1",
                 f"v_permlane32_swap_b32 v{V_T0}, v{V_MAX}", "s_nop 1",
                 f"v_max3_f32 v{V_MAX}, v{V_T0}, v{V_MAX}, 0",
                 f"v_sub_f32 v{V_T0}, 0, v{V_MAX}", f"v_exp_f32 v{V_T0}, v{V_T0}"]
            T += [f"v_sub_f32 v{V_NEGM+i}, v{V_NEGM+i}, v{V_MAX}" for i in range(16)]
            T += [f"v_sub_f32 v{S+i}, v{S+i}, v{V_MAX}" for i in range(16)]
            T += [f"v_mul_f32 v{V_L}, v{V_L}, v{V_T0}"]
            T += [f"v_mul_f32 v{V_ACC+i}, v{V_ACC+i}, v{V_T0}" for i in range(128)]
            T += ["s_nop 1", f"s_setpc_b64 s[{S_RET}:{S_RET+1}]"]
            self.tail.append(T)
    def check_site(self, t):
        k = self.nsite; self.nsite += 1
        self.e(f"s_cbranch_vccnz L_rs{k}\nL_rb{k}:")
        self.tail.append([f"L_rs{k}:", f"s_call_b64 s[{S_RET}:{S_RET+1}], L_rescale{t&1}", f"s_branch L_rb{k}"])
    def o_cvt(self, dt):
        b = V_ACC + 16 * dt
        return [f"v_cvt_pk_bf16_f32 v{b+i}, v{b+2*i}, v{b+2*i+1}" for i in range(8)]
    def pv_phase(self, n, tv, extra_end=()):
        last = tv == 31
        if last:
            ex, cv = self.softmax_exp(31)
            for it in ex[:9] + cv[:4]: self.e(it)
        self.head([n + 1])
        F = A_F[n & 1]; mf = []
        for ks in range(2):
            for dt in range(8):
                acc = vr(V_ACC + 16 * dt, 16)
                cc = "0" if (tv == 0 and ks == 0) else acc
                mf.append(f"{self.MF} {acc}, {ar(F+4*(ks*8+dt),4)}, {vr(V_P+4*ks,4)}, {cc}")
        gaps = [[] for _ in range(16)]
        S = V_S[tv & 1]
        adds = [f"v_add_f32 v{V_L}, v{V_L}, v{S+i}" for i in range(16)]
        if last:
            self.spread(gaps, ex[9:], 0, 3)
            self.spread(gaps, self.reads(n + 1), 0, 12)
            self.spread(gaps, cv[4:], 4, 5)
            self.spread(gaps, adds, 4, 11)
            gaps[12] += [f"v_mov_b32 v{V_T0}, v{V_L}"]
            gaps[13] += ["s_nop 0", f"v_permlane32_swap_b32 v{V_T0}, v{V_L}"] + self.o_cvt(0)
            gaps[14] += [f"v_add_f32 v{V_L}, v{V_T0}, v{V_L}"] + self.o_cvt(1) + [f"v_rcp_f32 v{V_RINV}, v{V_L}"]
            gaps[15] += self.o_cvt(2)
            self.place_dma(gaps, self.dma(n + self.c.D), 5)
        else:
            self.spread(gaps, adds, 0, 7)
            self.spread(gaps, self.reads(n + 1), 0, 12)
            self.spread(gaps, self.max_chain(tv + 1), 8, 13)
            gaps[14].append(f"v_cmp_lt_f32 vcc, s{S_THR}, v{V_MAX}")
            self.place_dma(gaps, self.dma(n + self.c.D), 0)
        gaps[15] += list(extra_end)
        self.run_phase(mf, gaps)
        if not last: self.check_site(tv + 1)
    def out_epi(self, cb):
        r = []
        for nt in range(2):
            b = V_OUT + 32 * (cb & 1) + 16 * nt
            for pc in range(2):
                for i in range(8): r.append(f"v_mul_f32 v{b+8*pc+i}, v{V_RINV}, v{b+8*pc+i}")
                for i in range(4): r.append(f"v_cvt_pk_bf16_f32 v{b+8*pc+i}, v{b+8*pc+2*i}, v{b+8*pc+2*i+1}")
                r.append((f"buffer_store_dwordx4 {vr(b+8*pc,4)}, v{V_ST}, {srd(SRD_P)}, s{S_POFF} offen offset:{(2*nt+pc)*1024} {self.c.st_flag}", "st"))
        r.append(f"s_add_u32 s{S_POFF}, s{S_POFF}, 4096")
        return r
    def o_phase(self, n):
        j = n - 78; cb = j >> 1; dh = j & 1
        self.head([n + 1])
        F = A_F[n & 1]; mf = []
        for ks in range(8):
            for nt in range(2):
                acc = vr(V_OUT + 32 * (cb & 1) + 16 * nt, 16)
                cc = "0" if (dh == 0 and ks == 0) else acc
                kk = dh * 8 + ks
                mf.append(f"{self.MF} {acc}, {ar(F+4*(ks*2+nt),4)}, {vr(V_ACC+16*(kk>>1)+4*(kk&1),4)}, {cc}")
        gaps = [[] for _ in range(16)]
        self.spread(gaps, self.reads(n + 1), 0, 12)
        if j == 0:
            for dt in range(3, 8): self.spread(gaps, self.o_cvt(dt), 2 * dt - 3, 2 * dt - 2)
        if cb > 0:
            ep = self.out_epi(cb - 1); h = len(ep) // 2
            if dh == 0: self.spread(gaps, ep[:h], 4, 15)
            else: self.spread(gaps, ep[h:], 0, 11)
        self.place_dma(gaps, self.dma(n + self.c.D), 0)
        self.run_phase(mf, gaps)

    def prologue(self):
        c = self.c
        self.e(f"""
        s_cmp_ge_u32 s2, 256
        s_cbranch_scc1 L_end
        s_and_b32 s3, s2, 1
        s_mul_i32 s4, s3, 40
        s_add_u32 s4, s0, s4
        s_addc_u32 s5, s1, 0
        s_load_dwordx8 s[48:55], s[4:5], 0    ; x, k, v, wq
        s_load_dwordx2 s[56:57], s[4:5], 32   ; wo
        s_load_dwordx2 s[58:59], s[0:1], 96   ; ws
        """)
        if c.stamps:
            self.e(f"v_mov_b32 v{V_STAMP}, 0"); self.stamp()
        self.e(f"""
        s_bfe_u32 s4, s2, 0x20001
        s_bfe_u32 s5, s2, 0x20003
        s_lshl_b32 s4, s4, 2
        s_add_u32 s4, s4, s5                  ; s4 = h
        s_lshr_b32 s6, s2, 5                  ; s6 = b
        v_lshrrev_b32 v1, 6, v0               ; wave
        v_and_b32 v0, 63, v0                  ; lane
        v_lshrrev_b32 v2, 5, v0               ; hf
        v_readfirstlane_b32 s{S_WAVE}, v1
        v_and_b32 v3, 31, v0
        v_lshrrev_b32 v4, 3, v0               ; l>>3
        v_lshrrev_b32 v5, 4, v0               ; l>>4 = g
        v_and_b32 v6, 7, v0                   ; l&7
        s_lshl_b32 s{S_WB}, s{S_WAVE}, 12
        v_lshl_add_u32 v7, v1, 5, v4          ; 32w + (l>>3)
        v_mul_u32_u24 v7, 896, v7
        v_xor_b32 v{V_T0}, v6, v5
        v_lshl_add_u32 v{V_DX}, v{V_T0}, 4, v7
        v_xor_b32 v{V_T0}, 4, v{V_T0}
        v_lshl_add_u32 v{V_DX+1}, v{V_T0}, 4, v7
        v_add_u32 v{V_DX+1}, 6144, v{V_DX+1}
        v_add_u32 v{V_DX+2}, 12288, v{V_DX}
        v_add_u32 v{V_DX+3}, 12288, v{V_DX+1}
        v_lshl_add_u32 v{V_T1}, v1, 3, v2     ; 8w + hf
        v_lshlrev_b32 v{V_T0}, 2, v2
        v_xor_b32 v{V_T0}, v{V_T0}, v3        ; (l&31) ^ (hf<<2)
        v_lshlrev_b32 v{V_T0}, 4, v{V_T0}
        v_lshl_add_u32 v{V_DW}, v{V_T1}, 13, v{V_T0}
        v_lshl_add_u32 v{V_DV}, v{V_T1}, 9, v{V_T0}
        v_xor_b32 v{V_DW+1}, 128, v{V_DW}
        v_add_u32 v{V_DW+1}, {16384-1024}, v{V_DW+1}
        v_add_u32 v{V_DW+2}, {2*(16384-1024)}, v{V_DW}
        v_add_u32 v{V_DW+3}, {2*(16384-1024)}, v{V_DW+1}
        v_xor_b32 v{V_DV+1}, 128, v{V_DV}
        """)
        if c.rot:
            self.e(f"""
            s_lshl_b32 s7, s5, 1
            s_add_u32 s7, s7, s6                  ; b + 2*hl  (0..13)
            s_cmp_ge_u32 s7, 7
            s_cselect_b32 s{S_TMP}, 7, 0
            s_sub_u32 s7, s7, s{S_TMP}
            s_lshl_b32 s{S_XOFF}, s7, 7
            s_lshl_b32 s{S_WOFF}, s7, 19
            """)
        else:
            self.e(f"s_mov_b32 s{S_XOFF}, 0\ns_mov_b32 s{S_WOFF}, 0")
        self.e(f"""
        s_mul_i32 s7, s6, 114688
        s_lshl_b32 s{S_TMP}, s4, 9
        s_mov_b32 s{SRD_X+2}, 114688
        s_mov_b32 s{SRD_X+3}, 0x20000
        s_sub_u32 s{SRD_W+2}, {448*8192}, s{S_TMP}
        s_mov_b32 s{SRD_W+3}, 0x20000
        s_waitcnt lgkmcnt(0)
        s_add_u32 s{SRD_X}, s48, s7
        s_addc_u32 s{SRD_X+1}, s49, 0
        s_add_u32 s{SRD_W}, s54, s{S_TMP}
        s_addc_u32 s{SRD_W+1}, s55, 0
        """)
        for it in self.dma_x(0) + self.dma(0) + self.dma(1): self.emit(it)
        self.e(f"""
        s_lshl_b32 s7, s6, 4
        s_add_u32 s7, s7, s4
        s_xor_b32 s{S_TMP}, s3, 1
        s_lshr_b32 s7, s7, s{S_TMP}
        s_lshl_b32 s7, s7, 19
        """)
        if c.samekv: self.e("s_mov_b32 s7, 0")
        self.e(f"""
        s_add_u32 s{SRD_K}, s50, s7
        s_addc_u32 s{SRD_K+1}, s51, 0
        s_mov_b32 s{SRD_K+2}, 0x80000
        s_mov_b32 s{SRD_K+3}, 0x20000
        s_add_u32 s{SRD_V}, s52, s7
        s_addc_u32 s{SRD_V+1}, s53, 0
        s_mov_b32 s{SRD_V+2}, 0x80000
        s_mov_b32 s{SRD_V+3}, 0x20000
        s_mul_i32 s7, s4, 229376
        s_add_u32 s{SRD_O}, s56, s7
        s_addc_u32 s{SRD_O+1}, s57, 0
        s_mov_b32 s{SRD_O+2}, 229376
        s_mov_b32 s{SRD_O+3}, 0x20000
        s_lshl_b32 s7, s3, 3
        s_add_u32 s7, s7, s6
        s_lshl_b32 s7, s7, 4
        s_add_u32 s7, s7, s4                  ; (br*8+b)*16 + h
        s_mul_i32 s7, s7, 114688
        s_add_u32 s{SRD_P}, s58, s7
        s_addc_u32 s{SRD_P+1}, s59, 0
        s_mov_b32 s{SRD_P+2}, 114688
        s_mov_b32 s{SRD_P+3}, 0x20000
        s_mov_b32 s{S_KOFF}, 0
        s_mov_b32 s{S_VOFF}, 0
        s_mov_b32 s{S_POFF}, 0
        s_mov_b32 s{S_THR}, {hex(f2u(c.thr))}
        s_mov_b32 s{S_SCALE}, {hex(f2u(math.log2(math.e) / 16))}
        v_and_b32 v{V_T0}, 15, v{V_T1}
        v_xor_b32 v{V_T0}, v{V_T0}, v3
        v_lshlrev_b32 v{V_T0}, 4, v{V_T0}
        v_lshl_add_u32 v{V_DK}, v{V_T1}, 9, v{V_T0}
        v_xor_b32 v{V_DK+1}, 32, v{V_DK}
        v_xor_b32 v{V_DK+2}, 64, v{V_DK}
        v_xor_b32 v{V_DK+3}, 96, v{V_DK}
        v_and_b32 v{V_T0}, 1, v5
        v_lshlrev_b32 v{V_T0}, 2, v{V_T0}
        v_xor_b32 v{V_T0}, v{V_T0}, v6
        v_lshl_add_u32 v{V_DO}, v{V_T0}, 4, v7
        v_add_u32 v{V_DO+1}, 6144, v{V_DO}
        v_add_u32 v{V_DO+2}, 12288, v{V_DO}
        v_add_u32 v{V_DO+3}, 18432, v{V_DO}
        v_and_b32 v{V_T0}, 15, v3
        v_xor_b32 v{V_T0}, v{V_T0}, v2
        v_lshlrev_b32 v{V_T0}, 4, v{V_T0}
        v_lshl_add_u32 v{V_RK}, v3, 9, v{V_T0}
        """)
        for j in range(1, 8): self.e(f"v_xor_b32 v{V_RK+j}, {32*j}, v{V_RK}")
        self.e(f"""
        v_bfe_u32 v{V_T0}, v3, 1, 3
        v_xor_b32 v{V_T0}, v{V_T0}, v2
        v_lshlrev_b32 v{V_T0}, 4, v{V_T0}
        v_lshl_add_u32 v{V_T0}, v3, 7, v{V_T0}
        v_lshl_add_u32 v{V_T0}, v1, 12, v{V_T0}
        v_add_u32 v{V_RX}, {self.XBASE}, v{V_T0}
        v_xor_b32 v{V_RX+1}, 32, v{V_RX}
        v_xor_b32 v{V_RX+2}, 64, v{V_RX}
        v_xor_b32 v{V_RX+3}, 96, v{V_RX}
        v_bfe_u32 v4, v0, 2, 2                ; rr
        v_and_b32 v5, 1, v5                   ; g&1
        v_and_b32 v6, 3, v0                   ; ll&3
        v_lshlrev_b32 v7, 6, v4
        v_lshl_add_u32 v7, v5, 5, v7          ; rr*64 + (g&1)*32
        v_lshl_add_u32 v{V_T0}, v2, 2, v4
        v_lshl_add_u32 v{V_RV}, v{V_T0}, 9, v7
        v_lshl_add_u32 v{V_RV}, v6, 3, v{V_RV}
        v_lshl_add_u32 v{V_T1}, v2, 3, v4
        v_lshl_add_u32 v{V_RW}, v{V_T1}, 9, v7
        v_and_b32 v{V_T1}, 1, v0
        v_lshl_add_u32 v{V_RW}, v{V_T1}, 4, v{V_RW}
        v_bfe_u32 v{V_MAX}, v0, 1, 1
        v_lshl_add_u32 v{V_RW}, v{V_MAX}, 3, v{V_RW}
        """)
        for j in range(1, 4):
            self.e(f"v_xor_b32 v{V_RV+j}, {64*j}, v{V_RV}\nv_xor_b32 v{V_RW+j}, {64*j}, v{V_RW}")
        self.e(f"""
        v_lshrrev_b32 v4, 1, v4
        v_lshlrev_b32 v4, 6, v4
        v_lshl_add_u32 v{V_RO}, v{V_T0}, 7, v4
        v_lshl_add_u32 v{V_RO}, v{V_T1}, 5, v{V_RO}
        v_lshl_add_u32 v{V_RO}, v5, 4, v{V_RO}
        v_lshl_add_u32 v{V_RO}, v{V_MAX}, 3, v{V_RO}
        v_xor_b32 v{V_RO+1}, 64, v{V_RO}
        v_mul_u32_u24 v{V_ST}, 28672, v1
        v_lshl_add_u32 v{V_ST}, v0, 4, v{V_ST}
        """)
        for it in self.dma_x(1): self.emit(it)
        for n in range(2, self.c.D - 1):
            for it in self.dma(n): self.emit(it)

    def main(self):
        c = self.c
        self.prologue()
        self.head([0, ("X", 0)])
        self.stamp()
        for it in self.reads_x(0) + self.reads(0) + self.dma(c.D - 1): self.emit(it)
        for n in range(14): self.q_phase(n)
        self.stamp()
        self.e("s_nop 3")
        self.qk_phase(14, 0)
        self.first_max()
        self.qk_phase(15, 1)
        self.pv_phase(16, 0)
        self.stamp()
        self.e(f"s_mov_b32 s{S_CNT}, 14")
        self.e("L_loop:")
        i0 = len(self.L); vm0 = list(self.vm)
        self.qk_phase(17, 2); self.pv_phase(18, 1); self.qk_phase(19, 3)
        self.pv_phase(20, 2, extra_end=[f"s_sub_u32 s{S_CNT}, s{S_CNT}, 1", f"s_cmp_lg_u32 s{S_CNT}, 0"])
        self.e("s_cbranch_scc1 L_loop")
        i1 = len(self.L)
        assert [x + 4 for x in vm0] == self.vm, (vm0, self.vm)
        self.vm = [x + 52 for x in self.vm]
        self.loop_span = (i0, i1)
        self.stamp()
        self.qk_phase(73, 30); self.pv_phase(74, 29); self.qk_phase(75, 31); self.pv_phase(76, 30)
        self.pv_phase(77, 31)
        self.stamp()
        for n in range(78, 92): self.o_phase(n)
        self.e("s_nop 11")
        for it in self.out_epi(6): self.emit(it)
        self.stamp()
        if c.stamps:
            self.e("s_waitcnt vmcnt(0)")
            self.stamp()
            self.e(f"""
            s_lshl_b32 s7, s2, 2
            s_add_u32 s7, s7, s{S_WAVE}
            s_lshl_b32 s7, s7, 8
            s_add_u32 s7, s7, 0x4000000
            s_add_u32 s{SRD_P}, s58, s7
            s_addc_u32 s{SRD_P+1}, s59, 0
            s_mov_b32 s{SRD_P+2}, 256
            v_lshlrev_b32 v0, 2, v0
            buffer_store_dword v{V_STAMP}, v0, {srd(SRD_P)}, 0 offen
            """)
        self.e("L_end:\ns_endpgm")
        self.rescale_routines()
        errs = hazard.check(self.L, "main")
        errs += hazard.check(self.L[i0:i1] + self.L[i0:i1], "loop")
        for t in self.tail: errs += hazard.check(t, "tail")
        for er in errs: print(er, file=sys.stderr)
        assert not errs
        out = list(self.L)
        for t in self.tail: out += [l if l.endswith(":") else "    " + l for l in t]
        return "\n".join(out) + "\n"

def reduce_kernel(c):
    L = []
    def e(s):
        for l in s.strip("\n").split("\n"):
            l = l.strip()
            if l: L.append(l if l.endswith(":") else "    " + l)
    e(f"""
    s_cmp_ge_u32 s2, 448
    s_cbranch_scc1 L_rend
    s_load_dwordx2 s[4:5], s[0:1], 96
    s_load_dwordx2 s[6:7], s[0:1], 80
    s_mul_hi_u32 s16, s2, {(2**32 + 27)//28}      ; G = id / 28
    s_mul_i32 s17, s16, 28
    s_sub_u32 s17, s2, s17
    s_mul_i32 s18, s17, 37
    s_lshr_b32 s18, s18, 8                        ; w = rem / 7
    s_mul_i32 s19, s18, 7
    s_sub_u32 s19, s17, s19                       ; cb
    s_mul_i32 s20, s16, {16*114688}
    s_lshl_b32 s21, s17, 12
    v_lshlrev_b32 v1, 4, v0
    v_add_u32 v1, s21, v1
    s_mov_b32 s10, {16*114688}
    s_mov_b32 s11, 0x20000
    s_mov_b32 s14, {8*128*896*2}
    s_mov_b32 s15, 0x20000
    s_mov_b32 s22, 0
    s_waitcnt lgkmcnt(0)
    s_add_u32 s8, s4, s20
    s_addc_u32 s9, s5, 0
    s_mov_b32 s12, s6
    s_mov_b32 s13, s7
    """)
    for h in range(16):
        e(f"buffer_load_dwordx4 v[{16+4*h}:{19+4*h}], v1, s[8:11], s22 offen {c.ld_flag}")
        if h < 15: e("s_add_u32 s22, s22, 114688")
    e(f"""
    s_and_b32 s20, s16, 7                         ; b
    s_lshr_b32 s21, s16, 3                        ; br
    s_lshl_b32 s20, s20, 2
    s_add_u32 s20, s20, s18
    s_mul_i32 s20, s20, {32*1792}
    s_mul_i32 s21, s21, 896
    s_add_u32 s20, s20, s21
    s_lshl_b32 s21, s19, 7
    s_add_u32 s20, s20, s21
    v_and_b32 v2, 31, v0
    v_mul_u32_u24 v2, 1792, v2
    v_bfe_u32 v3, v0, 5, 1
    v_lshl_add_u32 v2, v3, 5, v2
    v_bfe_u32 v3, v0, 6, 1
    v_lshl_add_u32 v2, v3, 4, v2
    v_bfe_u32 v3, v0, 7, 1
    v_lshl_add_u32 v2, v3, 6, v2
    """)
    for h in range(16):
        e(f"s_waitcnt vmcnt({15-h})")
        for i in range(4):
            r = 16 + 4 * h + i
            if h == 0:
                e(f"v_lshlrev_b32 v{4+2*i}, 16, v{r}\nv_and_b32 v{5+2*i}, 0xffff0000, v{r}")
            else:
                e(f"""v_lshlrev_b32 v12, 16, v{r}
                v_and_b32 v13, 0xffff0000, v{r}
                v_add_f32 v{4+2*i}, v{4+2*i}, v12
                v_add_f32 v{5+2*i}, v{5+2*i}, v13""")
    for i in range(4): e(f"v_cvt_pk_bf16_f32 v{4+i}, v{4+2*i}, v{5+2*i}")
    e("buffer_store_dwordx4 v[4:7], v2, s[12:15], s20 offen\nL_rend:\ns_endpgm")
    errs = hazard.check(L, "reduce")
    assert not errs, errs
    return "\n".join(L) + "\n"

def khead(name): return f".globl {name}\n.p2align 8\n.type {name},@function\n{name}:\n"
def kdesc(name, vgpr, accum, sgpr):
    return f""".section .rodata,"a"
.p2align 6
.amdhsa_kernel {name}
  .amdhsa_next_free_vgpr {vgpr}
  .amdhsa_next_free_sgpr {sgpr}
  .amdhsa_accum_offset {accum}
  .amdhsa_group_segment_fixed_size 0
  .amdhsa_kernarg_size 104
  .amdhsa_user_sgpr_count 2
  .amdhsa_user_sgpr_kernarg_segment_ptr 1
  .amdhsa_system_sgpr_workgroup_id_x 1
  .amdhsa_float_denorm_mode_32 3
.end_amdhsa_kernel
"""
def build(**kw):
    c = Cfg(**kw)
    K1 = NAME + "_kernel"; K2 = "head_reduce_kernel"
    s = f"; fused Q-projection + attention + O-projection per (branch, batch, head); second launch sums the 16 head partials\n"
    s += f"; @launch kernel={K1} grid=(256,1,1) block=(256,1,1) lds=98304\n"
    s += f"; @launch kernel={K2} grid=(448,1,1) block=(256,1,1) lds=0\n"
    s += '.amdgcn_target "amdgcn-amd-amdhsa--gfx950"\n.text\n'
    s += khead(K1) + Gen(c).main() + khead(K2) + reduce_kernel(c)
    s += kdesc(K1, 512, 256, 64) + kdesc(K2, 80, 80, 32)
    return s
if __name__ == "__main__":
    out = sys.argv[1] if len(sys.argv) > 1 else f"cdna_kernels/{NAME}.s"
    kw = eval("dict(" + (sys.argv[2] if len(sys.argv) > 2 else "") + ")")
    open(out, "w").write(build(**kw))
    print("wrote", out)
```
